```python
import torch

def _softmax(x, axis=-1):
    return torch.softmax(x, dim=axis)
def _gelu(x):
    return torch.nn.functional.gelu(x, approximate="tanh")
def _silu(x):
    return torch.nn.functional.silu(x)
def _sigmoid(x):
    return torch.sigmoid(x)
def _layernorm(x, axis=-1, eps=1e-5):
    m = x.mean(dim=axis, keepdim=True)
    v = x.var(dim=axis, keepdim=True, unbiased=False)
    return (x - m) / torch.sqrt(v + eps)
def _scatter_add(tgt, idx, src, axis=0):
    return tgt.clone().index_add_(axis, idx, src)
def _segment_sum(src, seg, n):
    out = torch.zeros((n,) + src.shape[1:], dtype=src.dtype)
    return out.index_add_(0, seg, src)
def _pad(x, pw):
    flat = tuple(v for pair in reversed(pw) for v in pair)
    return torch.nn.functional.pad(x, flat)

kernel_name = 'gather_scatter__molecular_angular_gemnet__graph'

def setup_inputs():

    _w = (lambda a: (lambda t: t.to(torch.bfloat16) if t.is_floating_point() else t)(torch.as_tensor(a)))
    N, deg, De, L = 10000, 16, 16, 2
    E = N * deg
    T = E * deg
    NR = 8
    dist = torch.rand(E).to(float)
    angle = (torch.rand(T) * torch.pi).to(float)
    centers = torch.linspace(0.0, 1.0, NR).to(float)
    ang_freq = torch.arange(1, L + 1).to(float)
    return {
        "m": _w((lambda *s: torch.randn(*s, dtype=torch.bfloat16) * 0.05)(E, De)),
        "idx_in": _w((lambda lo, hi, *s: torch.randint(lo, hi, s))(0, E, T).to(torch.int64)),
        "idx_out": _w((lambda lo, hi, *s: torch.randint(lo, hi, s))(0, E, T).to(torch.int64)),
        "dist": _w(dist),
        "angle": _w(angle),
        "centers": _w(centers),
        "ang_freq": _w(ang_freq),
        "w_rbf": _w((lambda *s: torch.randn(*s, dtype=torch.bfloat16) * 0.2)(NR, De)),
        "w_sbf": _w((lambda *s: torch.randn(*s, dtype=torch.bfloat16) * 0.2)(NR * L, De)),
        "w_down": _w((lambda *s: torch.randn(*s, dtype=torch.bfloat16) * 0.2)(De, De)),
        "w_up": _w((lambda *s: torch.randn(*s, dtype=torch.bfloat16) * 0.2)(De, De)),
    }

def reference(m, idx_in, idx_out, dist, angle, centers, ang_freq, w_rbf, w_sbf, w_down, w_up):
    E, De = m.shape[0], m.shape[1]
    NR = centers.shape[0]
    L = ang_freq.shape[0]
    rbf = torch.exp(-10.0 * (dist[:, None] - centers[None, :]) ** 2)
    cbf = torch.cos(ang_freq[None, :] * angle[:, None])
    rbf_t = rbf[idx_out]
    sbf = torch.reshape(rbf_t[:, :, None] * cbf[:, None, :], (-1, NR * L))
    x = (m[idx_in] @ w_down) * (sbf @ w_sbf)
    agg = _segment_sum(x, idx_out, E)
    return m + (agg @ w_up) * (rbf @ w_rbf)
```

```python
import sys
E=160000; T=2560000; NB=250; EB=640; NP=250; CH=10240
NW=10; SPW=25
SPLIT=80000
CAPS=6
LB=CAPS*256
TABROW=NW*128
WS_REC=0; WS_TAB=NP*CH*8
NAME="gather_scatter__molecular_angular_gemnet__graph"
OPT=dict(st1="", ld1="", pf_lo=0, pf_hi=0)
for a in sys.argv[2:]:
    k,v=a.split("="); OPT[k]=type(OPT.get(k,""))(v)
out=[]
def o(s): out.append(s)
def srd(d,blo,size,add=0):
    if add:
        o(f"s_add_u32 s{d}, s{blo}, {add}"); o(f"s_addc_u32 s{d+1}, s{blo+1}, 0")
    else:
        o(f"s_mov_b32 s{d}, s{blo}"); o(f"s_mov_b32 s{d+1}, s{blo+1}")
    o(f"s_mov_b32 s{d+2}, {size}"); o(f"s_mov_b32 s{d+3}, 0x00020000")
def desc(name,vg,sg=102):
    o('.section .rodata,"a"'); o(".p2align 6"); o(f".amdhsa_kernel {name}")
    o(f"  .amdhsa_next_free_vgpr {vg}"); o(f"  .amdhsa_next_free_sgpr {sg}")
    o(f"  .amdhsa_accum_offset {(vg+3)//4*4}"); o("  .amdhsa_group_segment_fixed_size 0")
    o("  .amdhsa_kernarg_size 112"); o("  .amdhsa_user_sgpr_count 2")
    o("  .amdhsa_user_sgpr_kernarg_segment_ptr 1"); o("  .amdhsa_system_sgpr_workgroup_id_x 1")
    o(".end_amdhsa_kernel")
def head(name):
    o(".text"); o(f".globl {name}"); o(".p2align 8"); o(f".type {name},@function"); o(f"{name}:")

K1_CNT=0; K1_START=1024; K1_REC=2048; K1_LDS=K1_REC+CH*8
def k1():
    head("part_kernel")
    O=4; I=16; A=28; B=34; R=44; W=54; t0,t1,t2,t3=74,75,76,77
    ld=OPT["ld1"]
    o(f"s_cmp_ge_u32 s2, {NP}"); o("s_cbranch_scc1 K1_END")
    o("s_load_dwordx4 s[24:27], s[0:1], 8")
    o("s_load_dwordx2 s[28:29], s[0:1], 32")
    o("s_load_dwordx2 s[30:31], s[0:1], 48")
    o("s_load_dwordx2 s[32:33], s[0:1], 104")
    o("v_lshlrev_b32 v1, 4, v0"); o("v_lshlrev_b32 v2, 3, v0"); o("v_lshlrev_b32 v3, 2, v0")
    o(f"s_mul_i32 s34, s2, {CH*4}"); o("s_add_u32 s35, s34, 16384"); o("s_add_u32 s36, s34, 32768")
    o(f"s_mul_i32 s37, s2, {CH*2}"); o("s_add_u32 s38, s37, 8192"); o("s_add_u32 s39, s37, 16384")
    o("s_waitcnt lgkmcnt(0)")
    o("s_load_dword s40, s[30:31], 0")
    srd(4,26,T*4)
    o(f"buffer_load_dwordx4 v[{O}:{O+3}], v1, s[4:7], s34 offen {ld}")
    o(f"buffer_load_dwordx4 v[{O+4}:{O+7}], v1, s[4:7], s35 offen {ld}")
    o(f"buffer_load_dwordx2 v[{O+8}:{O+9}], v2, s[4:7], s36 offen {ld}")
    srd(12,28,T*2)
    o(f"buffer_load_dwordx2 v[{A}:{A+1}], v2, s[12:15], s37 offen {ld}")
    o(f"buffer_load_dwordx2 v[{A+2}:{A+3}], v2, s[12:15], s38 offen {ld}")
    o(f"buffer_load_dword v{A+4}, v3, s[12:15], s39 offen {ld}")
    srd(8,24,T*4)
    o(f"buffer_load_dwordx4 v[{I}:{I+3}], v1, s[8:11], s34 offen {ld}")
    o(f"buffer_load_dwordx4 v[{I+4}:{I+7}], v1, s[8:11], s35 offen {ld}")
    o(f"buffer_load_dwordx2 v[{I+8}:{I+9}], v2, s[8:11], s36 offen {ld}")
    srd(16,32,NP*CH*8); srd(20,32,NB*TABROW,WS_TAB)
    o(f"v_and_b32 v{t0}, 0x3fc, v3"); o(f"v_mov_b32 v{t1}, 0"); o(f"v_mov_b32 v78, 8")
    o(f"ds_write_b32 v{t0}, v{t1} offset:{K1_CNT}")
    o("s_mov_b32 s41, 52429"); o(f"s_mov_b32 s42, {-EB}"); o("s_mov_b32 s43, 0xfc000000")
    o("s_waitcnt lgkmcnt(0)"); o("s_barrier")
    o("s_lshl_b32 s44, s40, 16"); o("s_and_b32 s45, s40, 0xffff0000")
    for i in range(10):
        if i in (0,4,8): o(f"s_waitcnt vmcnt({8-i//4})")
        o(f"v_lshrrev_b32 v{t0}, 7, v{O+i}")
        o(f"v_mul_u32_u24 v{t0}, s41, v{t0}")
        o(f"v_lshrrev_b32 v{t0}, 18, v{t0}")
        o(f"v_lshlrev_b32 v{B+i}, 2, v{t0}")
        o(f"ds_add_rtn_u32 v{R+i}, v{B+i}, v78 offset:{K1_CNT}")
        o(f"v_mad_i32_i24 v{t0}, v{t0}, s42, v{O+i}")
        o(f"v_lshlrev_b32 v{t0}, 22, v{t0}")
        o(f"v_and_b32 v{t1}, 15, v{O+i}")
        o(f"v_and_or_b32 v{W+2*i}, v{t0}, s43, v{t1}")
    o("s_waitcnt lgkmcnt(0)"); o("s_barrier")
    S=80
    o("v_and_b32 v79, 63, v0"); o("v_lshlrev_b32 v88, 4, v79")
    o(f"ds_read_b128 v[{S}:{S+3}], v88 offset:{K1_CNT}")
    o("s_waitcnt lgkmcnt(0)")
    o(f"v_add_u32 v{S+5}, v{S}, v{S+1}"); o(f"v_add3_u32 v{S+4}, v{S+5}, v{S+2}, v{S+3}")
    o(f"v_mov_b32 v{S+9}, v{S+4}")
    for sh in ("row_shr:1","row_shr:2","row_shr:4","row_shr:8"):
        o("s_nop 1"); o(f"v_add_u32_dpp v{S+9}, v{S+9}, v{S+9} {sh} row_mask:0xf bank_mask:0xf bound_ctrl:0")
    o("s_nop 1"); o(f"v_add_u32_dpp v{S+9}, v{S+9}, v{S+9} row_bcast:15 row_mask:0xa bank_mask:0xf")
    o("s_nop 1"); o(f"v_add_u32_dpp v{S+9}, v{S+9}, v{S+9} row_bcast:31 row_mask:0xc bank_mask:0xf")
    o(f"v_sub_u32 v92, v{S+9}, v{S+4}")
    o(f"v_add_u32 v93, v92, v{S}"); o(f"v_add_u32 v94, v92, v{S+5}"); o(f"v_add_u32 v95, v94, v{S+2}")
    o(f"ds_write_b128 v88, v[92:95] offset:{K1_START}")
    for i in range(10): o(f"ds_read_b32 v{B+i}, v{B+i} offset:{K1_START}")
    o("v_readfirstlane_b32 s46, v0"); o("s_cmp_ge_u32 s46, 64"); o("s_cbranch_scc1 K1_NOTAB")
    o(f"s_mul_i32 s47, s2, {(2**16+SPW-1)//SPW}"); o("s_lshr_b32 s47, s47, 16")
    o(f"s_mul_i32 s48, s47, {128-SPW*4}"); o("s_lshl_b32 s47, s2, 2"); o("s_add_u32 s47, s47, s48")
    o(f"s_mov_b32 s48, {4*TABROW}"); o("v_mul_u32_u24 v89, s48, v79"); o("v_add_u32 v89, s47, v89")
    for q in range(4):
        o(f"v_lshl_or_b32 v{S+q}, v{S+q}, 14, v{92+q}")
        o(f"buffer_store_dword v{S+q}, v89, s[20:23], 0 offen offset:{q*TABROW}")
    o("s_waitcnt vmcnt(7)")
    o("s_branch K1_TABD")
    o("K1_NOTAB:")
    o("s_waitcnt vmcnt(3)")
    o("K1_TABD:")
    for i in range(10):
        a=A+i//2
        if i&1: o(f"v_and_b32 v{t0}, 0xffff0000, v{a}")
        else: o(f"v_lshlrev_b32 v{t0}, 16, v{a}")
        o(f"v_mul_f32 v{t1}, s45, v{t0}"); o(f"v_mul_f32 v{t0}, s44, v{t0}")
        o(f"v_cvt_pk_bf16_f32 v{t0}, v{t0}, v{t1}")
        o(f"v_and_b32 v{t1}, 0xffff0000, v{t0}"); o(f"v_lshlrev_b32 v{t0}, 16, v{t0}")
        o(f"v_mul_f32 v{t1}, 0.15915494, v{t1}"); o(f"v_mul_f32 v{t0}, 0.15915494, v{t0}")
        o(f"v_fract_f32 v{t1}, v{t1}"); o(f"v_fract_f32 v{t0}, v{t0}")
        o(f"v_cos_f32 v{t1}, v{t1}"); o(f"v_cos_f32 v{t0}, v{t0}")
        o("s_nop 0")
        o(f"v_cvt_pk_bf16_f32 v{W+2*i+1}, v{t0}, v{t1}")
    o(f"s_mov_b32 s47, {SPLIT}"); o(f"s_mov_b32 s48, {(1<<25)-(SPLIT<<8)}")
    o("s_waitcnt vmcnt(0) lgkmcnt(0)")
    for i in range(10):
        o(f"v_cmp_le_u32 vcc, s47, v{I+i}")
        o(f"v_lshl_or_b32 v{W+2*i}, v{I+i}, 8, v{W+2*i}")
        o(f"v_add_u32 v{t0}, s48, v{W+2*i}")
        o(f"v_add_u32 v{B+i}, v{B+i}, v{R+i}")
        o(f"v_cndmask_b32 v{W+2*i}, v{W+2*i}, v{t0}, vcc")
        o(f"ds_write_b64 v{B+i}, v[{W+2*i}:{W+2*i+1}] offset:{K1_REC}")
    o("s_waitcnt lgkmcnt(0)"); o("s_barrier")
    o(f"v_add_u32 v2, 49152, v1")
    for q in range(5):
        if q<3: o(f"ds_read_b128 v[{4+4*q}:{7+4*q}], v1 offset:{K1_REC+q*16384}")
        else: o(f"ds_read_b128 v[{4+4*q}:{7+4*q}], v2 offset:{K1_REC+(q-3)*16384}")
    o(f"s_mul_i32 s34, s2, {CH*8}")
    for q in range(5):
        o(f"s_waitcnt lgkmcnt({4-q})")
        o(f"buffer_store_dwordx4 v[{4+4*q}:{7+4*q}], v1, s[16:19], s34 offen {OPT['st1']}")
        o("s_add_u32 s34, s34, 16384")
    o("K1_END:"); o("s_endpgm")
    desc("part_kernel",96,56)

K2_CNT=0; K2_STAGE=512; K2_LISTS=K2_STAGE+NW*1024; K2_LDS=K2_LISTS+80*LB
def k2():
    head("acc_kernel")
    vL8=1; vN=2; vH16=3; vIA=4; vRA=5; vSW=6; vSR=7; vEO=8; vEight=9; vLane=10
    ACC=16; WD=48; WU=50; WG0=52; WG1=54; WH=56; VM=58; RB=66; CEN=74
    BUF=76; REC=124; VA=140; VB=144; IT=152; PR=76; PT=128
    TAB=24; MSK=50
    o(f"s_cmp_ge_u32 s2, {NB}"); o("s_cbranch_scc1 K2_END")
    o("s_load_dwordx2 s[4:5], s[0:1], 104")
    o("s_load_dwordx2 s[12:13], s[0:1], 0")
    o("s_load_dwordx2 s[16:17], s[0:1], 88")
    o("s_load_dwordx2 s[90:91], s[0:1], 24")
    o("s_load_dwordx2 s[92:93], s[0:1], 40")
    o("s_load_dwordx8 s[60:67], s[0:1], 56")
    o("s_and_b32 s20, s2, 7"); o("s_lshr_b32 s21, s2, 3"); o("s_mul_i32 s22, s20, 31"); o("s_min_u32 s20, s20, 2")
    o("s_add_u32 s2, s22, s20"); o("s_add_u32 s2, s2, s21")
    o("v_lshrrev_b32 v11, 6, v0"); o(f"v_and_b32 v{vLane}, 63, v0")
    o("v_readfirstlane_b32 s3, v11")
    o(f"s_mul_i32 s20, s2, {TABROW}"); o("s_lshl_b32 s21, s3, 7"); o("s_add_u32 s20, s20, s21"); o(f"s_add_u32 s20, s20, {WS_TAB}")
    o("s_waitcnt lgkmcnt(0)")
    o("s_add_u32 s22, s4, s20"); o("s_addc_u32 s23, s5, 0")
    o(f"s_load_dwordx16 s[{TAB}:{TAB+15}], s[22:23], 0"); o(f"s_load_dwordx8 s[{TAB+16}:{TAB+23}], s[22:23], 64")
    o(f"s_load_dword s{TAB+24}, s[22:23], 96")
    o(f"s_mov_b32 s6, {NP*CH*8}"); o("s_mov_b32 s7, 0x00020000")
    o(f"s_mov_b32 s14, {E*32}"); o("s_mov_b32 s15, 0x00020000"); o(f"s_mov_b32 s18, {E*32}"); o("s_mov_b32 s19, 0x00020000")
    o(f"v_lshlrev_b32 v{vL8}, 3, v{vLane}"); o(f"v_and_b32 v{vN}, 15, v0")
    o(f"v_and_b32 v11, 1, v0"); o(f"v_lshlrev_b32 v{vH16}, 4, v11"); o(f"v_mov_b32 v{vEight}, 8")
    o(f"s_mul_i32 s20, s3, {8*LB}"); o(f"s_add_u32 s20, s20, {K2_LISTS}")
    o(f"v_bfe_u32 v11, v0, 3, 2"); o(f"v_bfe_u32 v12, v0, 5, 1"); o(f"v_bfe_u32 v13, v0, 1, 2")
    o(f"v_lshlrev_b32 v11, 6, v11"); o(f"v_lshl_or_b32 v11, v12, 5, v11"); o(f"v_lshl_or_b32 v11, v13, 3, v11")
    o(f"v_add_u32 v{vIA}, s20, v11")
    o(f"v_bfe_u32 v12, v0, 4, 2")
    o(f"v_lshl_add_u32 v{vRA}, v12, 6, s20")
    o(f"s_lshl_b32 s21, s3, 10"); o(f"s_add_u32 s21, s21, {K2_STAGE}")
    o(f"v_lshl_add_u32 v{vSW}, v{vLane}, 4, s21"); o(f"v_add_u32 v{vSR}, s21, v{vL8}")
    o(f"s_mul_i32 s20, s2, {EB}"); o("s_lshl_b32 s21, s3, 6"); o("s_add_u32 s20, s20, s21")
    o(f"v_add_u32 v11, s20, v{vN}")
    o(f"v_lshlrev_b32 v13, 3, v12"); o(f"v_lshl_or_b32 v{vEO}, v11, 5, v13")
    o(f"v_lshlrev_b32 v11, 1, v11")
    srd(20,90,E*2)
    for g in range(4): o(f"buffer_load_ushort v{RB+2*g}, v11, s[20:23], 0 offen offset:{g*32}")
    for g in range(4): o(f"buffer_load_dwordx2 v[{VM+2*g}:{VM+2*g+1}], v{vEO}, s[12:15], 0 offen offset:{g*512}")
    srd(20,92,16)
    o(f"v_and_b32 v13, 8, v13")
    o(f"buffer_load_dwordx2 v[{CEN}:{CEN+1}], v13, s[20:23], 0 offen")
    o(f"v_lshlrev_b32 v11, 1, v{vN}"); o(f"v_lshl_or_b32 v13, v12, 7, v11"); o(f"v_lshl_or_b32 v14, v12, 8, v11")
    def wload(dst,sb,size,va,off,st):
        srd(20,sb,size)
        for j in range(4):
            o(f"buffer_load_ushort v{140+2*(dst-WD)+j}, v{va}, s[20:23], 0 offen offset:{off+j*st}")
    wload(WH,60,256,13,0,32); wload(WG0,62,512,14,0,64); wload(WG1,62,512,14,32,64); wload(WD,64,512,13,0,32); wload(WU,66,512,13,0,32)
    for i in range(32): o(f"v_mov_b32 v{ACC+i}, 0")
    def initcnt():
        o(f"v_mov_b32 v11, {LB}"); o(f"v_mov_b32 v12, {K2_LISTS}"); o(f"v_and_b32 v13, 127, v0")
        o(f"v_mad_u32_u24 v11, v11, v13, v12"); o("v_lshlrev_b32 v13, 2, v13")
        o(f"ds_write_b32 v13, v11 offset:{K2_CNT}")
    initcnt()
    o("s_mov_b32 s101, 0")
    o("s_waitcnt lgkmcnt(0)")
    o(f"s_mul_i32 s49, s3, {SPW*CH*8}"); o("s_mov_b32 s100, 0")
    def mask(m,c):
        o(f"s_bfm_b64 s[{m}:{m+1}], s{c}, 0"); o(f"s_cmp_ge_u32 s{c}, 64"); o(f"s_cselect_b64 s[{m}:{m+1}], -1, s[{m}:{m+1}]")
    for j in range(SPW):
        m=MSK+2*j
        o(f"s_and_b32 s20, s{TAB+j}, 0x1ffff"); o(f"s_lshr_b32 s21, s{TAB+j}, 17"); o("s_add_u32 s20, s20, s49")
        mask(m,21)
        o(f"s_or_b32 exec_lo, s{m}, 1"); o(f"s_mov_b32 exec_hi, s{m+1}")
        o(f"buffer_load_dwordx2 v[{PR+2*j}:{PR+2*j+1}], v{vL8}, s[4:7], s20 offen")
        o(f"s_cmp_gt_u32 s21, 64"); o(f"s_cselect_b32 s21, {1<<j}, 0"); o("s_or_b32 s100, s100, s21")
        o(f"s_add_u32 s49, s49, {CH*8}")
    X=PR+2*SPW
    def place(r,m,t):
        o(f"s_mov_b64 exec, s[{m}:{m+1}]")
        o(f"v_lshrrev_b32 v{t}, 23, v{r}"); o(f"v_and_b32 v{t}, 0x1fc, v{t}")
        o(f"ds_add_rtn_u32 v{t}, v{t}, v{vEight} offset:{K2_CNT}"); o("s_waitcnt lgkmcnt(0)")
        o(f"v_min_u32 v{t}, {K2_LDS-8}, v{t}"); o(f"ds_write_b64 v{t}, v[{r}:{r+1}]")
    def xnext(lbl):
        o("s_ff1_i32_b32 s22, s100"); o("s_mov_b32 m0, s22"); o(f"s_mul_i32 s23, s3, {SPW}"); o(f"s_movrels_b32 s21, s{TAB}")
        o("s_add_u32 s23, s23, s22"); o(f"s_mul_i32 s23, s23, {CH*8}")
        o("s_and_b32 s20, s21, 0x1ffff"); o("s_lshr_b32 s21, s21, 17"); o("s_add_u32 s20, s20, s23")
        o("s_lshl_b32 s23, s8, 3"); o("s_add_u32 s20, s20, s23"); o("s_sub_u32 s21, s21, s8")
        mask(10,21)
        o("s_add_u32 s8, s8, 64"); o("s_cmp_gt_u32 s21, 64"); o(f"s_cbranch_scc1 {lbl}")
        o("s_bitset0_b32 s100, s22"); o("s_mov_b32 s8, 64"); o(f"{lbl}:")
    o("s_mov_b32 s8, 64"); o("s_mov_b64 s[10:11], 0"); o("s_mov_b32 s20, 0")
    o("s_cmp_eq_u32 s100, 0"); o("s_cbranch_scc1 K2_X0")
    xnext("K2_X0")
    o("s_or_b32 exec_lo, s10, 1"); o("s_mov_b32 exec_hi, s11")
    o(f"buffer_load_dwordx2 v[{X}:{X+1}], v{vL8}, s[4:7], s20 offen")
    o("s_mov_b64 exec, -1")
    o("s_barrier")
    for k in range(5):
        o(f"s_waitcnt vmcnt({SPW+1-5*(k+1)})")
        for q in range(5):
            j=5*k+q; o(f"v_lshrrev_b32 v{PT+q}, 23, v{PR+2*j}"); o(f"v_and_b32 v{PT+q}, 0x1fc, v{PT+q}")
        for q in range(5):
            j=5*k+q; o(f"s_mov_b64 exec, s[{MSK+2*j}:{MSK+2*j+1}]")
            o(f"ds_add_rtn_u32 v{PT+q}, v{PT+q}, v{vEight} offset:{K2_CNT}")
        o("s_mov_b64 exec, -1"); o("s_waitcnt lgkmcnt(0)")
        for q in range(5): o(f"v_min_u32 v{PT+q}, {K2_LDS-8}, v{PT+q}")
        for q in range(5):
            j=5*k+q; o(f"s_mov_b64 exec, s[{MSK+2*j}:{MSK+2*j+1}]")
            o(f"ds_write_b64 v{PT+q}, v[{PR+2*j}:{PR+2*j+1}]")
        o("s_mov_b64 exec, -1")
    o("s_cmp_eq_u64 s[10:11], 0"); o("s_cbranch_scc1 K2_RBF")
    o("K2_XL:")
    o("s_waitcnt vmcnt(0)")
    place(X,10,PT+5)
    o("s_cmp_eq_u32 s100, 0"); o("s_cbranch_scc1 K2_XD")
    xnext("K2_X1")
    o("s_mov_b64 exec, s[10:11]"); o("s_waitcnt lgkmcnt(0)")
    o(f"buffer_load_dwordx2 v[{X}:{X+1}], v{vL8}, s[4:7], s20 offen")
    o("s_branch K2_XL")
    o("K2_XD:"); o("s_mov_b64 exec, -1")
    o("K2_RBF:")
    for i in range(10): o(f"v_lshl_or_b32 v{WD+i}, v{141+2*i}, 16, v{140+2*i}")
    o("K2_COMMON:")
    o("s_waitcnt vmcnt(0) lgkmcnt(0)"); o("s_barrier")
    o(f"v_lshlrev_b32 v11, 2, v{vLane}")
    o(f"ds_read_b32 v12, v11 offset:{K2_CNT}"); o(f"ds_read_b32 v13, v11 offset:{K2_CNT+256}")
    o("s_lshl_b32 s20, s3, 5"); o(f"v_lshrrev_b32 v14, 5, v{vLane}"); o("v_lshl_add_u32 v14, v14, 2, s20")
    for i in range(4): o(f"ds_read_b32 v{PT+i}, v14 offset:{K2_CNT+8*i}")
    o(f"v_mov_b32 v14, {LB}"); o(f"v_mov_b32 v15, {K2_LISTS+LB}"); o(f"v_mad_u32_u24 v14, v14, v{vLane}, v15")
    o(f"v_add_u32 v15, {64*LB}, v14")
    o(f"v_and_b32 v11, 0xf8, v{vL8}"); o(f"v_mov_b32 v{PT+8}, -1"); o(f"v_mov_b32 v{PT+9}, 0")
    o("s_waitcnt lgkmcnt(0)")
    o("v_cmp_gt_u32 vcc, v12, v14"); o("v_cmp_gt_u32 s[20:21], v13, v15")
    o("s_or_b64 vcc, vcc, s[20:21]"); o("s_cbranch_vccnz K2_SLOWINIT")
    NS=50
    o(f"s_mul_i32 s22, s3, {8*CAPS}"); o(f"s_add_u32 s22, s22, {K2_LISTS//256}")
    for i in range(4):
        o(f"v_add_u32 v12, 255, v{PT+i}"); o(f"v_add_u32 v13, v11, v{PT+i}"); o("v_and_b32 v14, 0xffffff00, v12")
        o("v_lshrrev_b32 v12, 8, v12")
        o("v_cmp_lt_u32 vcc, v13, v14")
        o(f"v_readlane_b32 s{NS+2*i}, v12, 0"); o(f"v_readlane_b32 s{NS+2*i+1}, v12, 32")
        o("s_mov_b64 exec, vcc")
        o(f"ds_write_b64 v13, v[{PT+8}:{PT+9}]")
        o("s_mov_b64 exec, -1")
        for h in range(2):
            o(f"s_sub_u32 s{NS+2*i+h}, s{NS+2*i+h}, s22"); o(f"s_add_u32 s22, s22, {CAPS}")
    o("s_mov_b32 s58, 0x05040100"); o("s_mov_b32 s59, 0x07060302")
    order=[(g,h) for h in range(2) for g in range(4)]
    def issue(q):
        g,h=order[q]; li=2*g+h; b=BUF+(q&1)*4*CAPS
        if g==0:
            srd(8,12,0,h*SPLIT*32); o(f"s_mov_b32 s60, {(SPLIT if h==0 else E-SPLIT)*32}")
        for s in range(CAPS): o(f"ds_read_b32 v{IT+s}, v{vIA} offset:{li*LB+s*256}")
        for s in range(CAPS):
            o(f"s_waitcnt lgkmcnt({CAPS-1-s})")
            o(f"v_bfe_u32 v{IT+s}, v{IT+s}, 8, 17"); o(f"s_cmp_gt_u32 s{NS+li}, {s}"); o("s_cselect_b32 s10, s60, 0")
            o(f"v_lshl_or_b32 v{IT+s}, v{IT+s}, 5, v{vH16}")
            o(f"buffer_load_dwordx4 v[{b+4*s}:{b+4*s+3}], v{IT+s}, s[8:11], 0 offen")
    def process(q,last):
        g,h=order[q]; li=2*g+h; b=BUF+(q&1)*4*CAPS; a=ACC+8*g
        for s in range(CAPS):
            o(f"s_cmp_le_u32 s{NS+li}, {s}"); o(f"s_cbranch_scc1 K2_P{q}")
            for u in range(4): o(f"ds_read_b128 v[{REC+4*u}:{REC+4*u+3}], v{vRA} offset:{li*LB+s*256+16*u}")
            o(f"s_waitcnt vmcnt({(0 if last else CAPS)+CAPS-1-s})")
            o(f"ds_write_b128 v{vSW}, v[{b+4*s}:{b+4*s+3}]")
            o(f"ds_read_b64_tr_b16 v[{VA}:{VA+1}], v{vSR}"); o(f"ds_read_b64_tr_b16 v[{VA+2}:{VA+3}], v{vSR} offset:512")
            o("s_waitcnt lgkmcnt(3)")
            for k in range(8): o(f"v_cmp_eq_u32_sdwa s[{62+2*k}:{63+2*k}], v{REC+2*k}, v{vN} src0_sel:BYTE_0 src1_sel:DWORD")
            for k in range(8): o(f"v_cndmask_b32 v{REC+2*k+1}, 0, v{REC+2*k+1}, s[{62+2*k}:{63+2*k}]")
            for d in range(4): o(f"v_perm_b32 v{VB+d}, v{REC+4*d+3}, v{REC+4*d+1}, s58")
            for d in range(4): o(f"v_perm_b32 v{VB+4+d}, v{REC+4*d+3}, v{REC+4*d+1}, s59")
            o("s_waitcnt lgkmcnt(0)")
            o(f"v_mfma_f32_16x16x32_bf16 v[{a}:{a+3}], v[{VA}:{VA+3}], v[{VB}:{VB+3}], v[{a}:{a+3}]")
            o(f"v_mfma_f32_16x16x32_bf16 v[{a+4}:{a+7}], v[{VA}:{VA+3}], v[{VB+4}:{VB+7}], v[{a+4}:{a+7}]")
        o(f"K2_P{q}:")
    issue(0)
    for q in range(8):
        if q<7: issue(q+1)
        process(q,q==7)
    o("s_cmp_lg_u32 s101, 0"); o("s_cbranch_scc1 K2_SLOWNEXT")
    o("K2_EPI:")
    o("s_waitcnt vmcnt(0)")
    t=BUF
    def rnd(a,b,p):
        o(f"v_cvt_pk_bf16_f32 v{p}, v{a}, v{b}"); o(f"v_lshlrev_b32 v{a}, 16, v{p}"); o(f"v_and_b32 v{b}, 0xffff0000, v{p}")
    for j in range(4):
        o(f"v_and_b32 v{t+40+j}, 0xffff0000, v{CEN+j//2}" if j&1 else f"v_lshlrev_b32 v{t+40+j}, 16, v{CEN+j//2}")
    for g in range(4):
        a=ACC+8*g; rb=RB+2*g
        o(f"v_lshlrev_b32 v{rb}, 16, v{rb}")
        for j in range(4): o(f"v_sub_f32 v{t+j}, v{rb}, v{t+40+j}")
        rnd(t,t+1,t+4); rnd(t+2,t+3,t+4)
        for j in range(4): o(f"v_mul_f32 v{t+j}, v{t+j}, v{t+j}")
        rnd(t,t+1,t+4); rnd(t+2,t+3,t+4)
        for j in range(4): o(f"v_mul_f32 v{t+j}, 0xc1200000, v{t+j}")
        rnd(t,t+1,t+4); rnd(t+2,t+3,t+4)
        for j in range(4): o(f"v_mul_f32 v{t+j}, 0x3fb8aa3b, v{t+j}")
        for j in range(4): o(f"v_exp_f32 v{t+j}, v{t+j}")
        o(f"v_cvt_pk_bf16_f32 v{t+4}, v{a}, v{a+1}"); o(f"v_cvt_pk_bf16_f32 v{t+5}, v{a+2}, v{a+3}")
        o(f"v_cvt_pk_bf16_f32 v{t+6}, v{a+4}, v{a+5}"); o(f"v_cvt_pk_bf16_f32 v{t+7}, v{a+6}, v{a+7}")
        o(f"v_cvt_pk_bf16_f32 v{rb}, v{t}, v{t+1}"); o(f"v_cvt_pk_bf16_f32 v{rb+1}, v{t+2}, v{t+3}")
        o(f"v_mfma_f32_16x16x16_bf16 v[{t+8}:{t+11}], v[{WD}:{WD+1}], v[{t+4}:{t+5}], 0")
        o(f"v_mfma_f32_16x16x16_bf16 v[{t+12}:{t+15}], v[{WD}:{WD+1}], v[{t+6}:{t+7}], 0")
        o(f"v_mfma_f32_16x16x16_bf16 v[{t+16}:{t+19}], v[{WG0}:{WG0+1}], v[{rb}:{rb+1}], 0")
        o(f"v_mfma_f32_16x16x16_bf16 v[{t+20}:{t+23}], v[{WG1}:{WG1+1}], v[{rb}:{rb+1}], 0")
        o(f"v_mfma_f32_16x16x16_bf16 v[{t+24}:{t+27}], v[{WH}:{WH+1}], v[{rb}:{rb+1}], 0")
        o("s_nop 7")
        for j in range(4): o(f"v_mul_f32 v{t+8+j}, v{t+8+j}, v{t+16+j}")
        for j in range(4): o(f"v_fmac_f32 v{t+8+j}, v{t+12+j}, v{t+20+j}")
        o(f"v_cvt_pk_bf16_f32 v{t+4}, v{t+8}, v{t+9}"); o(f"v_cvt_pk_bf16_f32 v{t+5}, v{t+10}, v{t+11}")
        o("s_nop 1")
        o(f"v_mfma_f32_16x16x16_bf16 v[{t+12}:{t+15}], v[{WU}:{WU+1}], v[{t+4}:{t+5}], 0")
        for j in range(4):
            o(f"v_and_b32 v{t+j}, 0xffff0000, v{VM+2*g+j//2}" if j&1 else f"v_lshlrev_b32 v{t+j}, 16, v{VM+2*g+j//2}")
        o("s_nop 4")
        for j in range(4): o(f"v_fmac_f32 v{t+j}, v{t+12+j}, v{t+24+j}")
        o(f"v_cvt_pk_bf16_f32 v{VM+2*g}, v{t}, v{t+1}"); o(f"v_cvt_pk_bf16_f32 v{VM+2*g+1}, v{t+2}, v{t+3}")
        o(f"buffer_store_dwordx2 v[{VM+2*g}:{VM+2*g+1}], v{vEO}, s[16:19], 0 offen offset:{g*512}")
    o("K2_END:"); o("s_endpgm")
    o("K2_SLOWINIT:")
    o("s_mov_b32 s101, 1"); o("s_mov_b32 s96, -1"); o("s_mov_b32 s98, 0"); o("s_mov_b32 s99, 0")
    o("K2_SLOWNEXT:")
    o("s_add_u32 s98, s98, 192")
    o("K2_SLOWADV:")
    o("s_cmp_lt_u32 s98, s99"); o("s_cbranch_scc1 K2_SLOWGO")
    o("s_add_u32 s96, s96, 1"); o(f"s_cmp_ge_u32 s96, {NP}"); o("s_cbranch_scc1 K2_EPI")
    o(f"s_mul_i32 s20, s96, {(2**16+SPW-1)//SPW}"); o("s_lshr_b32 s20, s20, 16"); o(f"s_mul_i32 s20, s20, {128-SPW*4}")
    o("s_lshl_b32 s21, s96, 2"); o("s_add_u32 s20, s20, s21"); o(f"s_mul_i32 s21, s2, {TABROW}"); o("s_add_u32 s20, s20, s21")
    o(f"s_add_u32 s20, s20, {WS_TAB}")
    o("s_load_dword s97, s[4:5], s20"); o("s_mov_b32 s98, 0"); o("s_waitcnt lgkmcnt(0)")
    o("s_lshr_b32 s99, s97, 17"); o("s_branch K2_SLOWADV")
    o("K2_SLOWGO:")
    o("s_waitcnt vmcnt(0) lgkmcnt(0)"); o("s_barrier")
    initcnt()
    o("s_waitcnt lgkmcnt(0)"); o("s_barrier")
    o("s_lshl_b32 s22, s3, 6"); o("s_add_u32 s22, s22, s98")
    o("s_cmp_ge_u32 s3, 3"); o("s_cbranch_scc1 K2_COMMON")
    o("s_cmp_ge_u32 s22, s99"); o("s_cbranch_scc1 K2_COMMON")
    o("s_sub_u32 s21, s99, s22"); mask(94,21)
    o("s_and_b32 s20, s97, 0x1ffff"); o("s_lshl_b32 s22, s22, 3"); o("s_add_u32 s20, s20, s22")
    o(f"s_mul_i32 s22, s96, {CH*8}"); o("s_add_u32 s20, s20, s22")
    o("s_mov_b64 exec, s[94:95]")
    o(f"buffer_load_dwordx2 v[{X}:{X+1}], v{vL8}, s[4:7], s20 offen")
    o("s_waitcnt vmcnt(0)")
    place(X,94,PT+5)
    o("s_mov_b64 exec, -1"); o("s_branch K2_COMMON")
    desc("acc_kernel",160)

o(f"; @launch kernel=part_kernel grid=({NP},1,1) block=(1024,1,1) lds={K1_LDS}")
o(f"; @launch kernel=acc_kernel grid=({NB},1,1) block=({NW*64},1,1) lds={K2_LDS}")
o('.amdgcn_target "amdgcn-amd-amdhsa--gfx950"')
k1(); k2()
open(sys.argv[1],"w").write("\n".join(out)+"\n")
```

```python
import sys
E=160000; T=2560000; NB=250; EB=640; NP=250; CH=10240
NW=10; SPW=25
SPLIT=80000
CAPS=6
LB=CAPS*256
TABROW=NW*256
WS_REC=0; WS_TAB=NP*CH*8; WS_BLOB=WS_TAB+256*TABROW
NAME="gather_scatter__molecular_angular_gemnet__graph"
OPT=dict(st1="sc0 sc1", ld1="nt", pf0=0, prio=0, dbg=-1, ld2="", abl=0, rd=2, xpos=1, pfk=2, pfn=0, pfm=1, pff="")
for a in sys.argv[2:]:
    k,v=a.split("="); OPT[k]=type(OPT.get(k,""))(v)
out=[]
def o(s): out.append(s)
def srd(d,blo,size,add=0):
    if add:
        o(f"s_add_u32 s{d}, s{blo}, {add}"); o(f"s_addc_u32 s{d+1}, s{blo+1}, 0")
    else:
        o(f"s_mov_b32 s{d}, s{blo}"); o(f"s_mov_b32 s{d+1}, s{blo+1}")
    o(f"s_mov_b32 s{d+2}, {size}"); o(f"s_mov_b32 s{d+3}, 0x00020000")
def desc(name,vg,sg=102):
    o('.section .rodata,"a"'); o(".p2align 6"); o(f".amdhsa_kernel {name}")
    o(f"  .amdhsa_next_free_vgpr {vg}"); o(f"  .amdhsa_next_free_sgpr {sg}")
    o(f"  .amdhsa_accum_offset {(vg+3)//4*4}"); o("  .amdhsa_group_segment_fixed_size 0")
    o("  .amdhsa_kernarg_size 112"); o("  .amdhsa_user_sgpr_count 2")
    o("  .amdhsa_user_sgpr_kernarg_segment_ptr 1"); o("  .amdhsa_system_sgpr_workgroup_id_x 1")
    o(".end_amdhsa_kernel")
def stamp(k,v):
    if OPT["dbg"]<0: return
    o("s_memrealtime vcc"); o("s_waitcnt lgkmcnt(0)"); o(f"v_writelane_b32 v{v}, vcc_lo, {k}")
def stampout(v,base,lbl):
    if OPT["dbg"]<0: return
    o("s_waitcnt vmcnt(0)"); stamp(15,v)
    o("v_readfirstlane_b32 s20, v0"); o(f"s_cmp_lg_u32 s20, {64*(OPT['dbg'] if base else min(15,OPT['dbg']*2))}"); o(f"s_cbranch_scc1 {lbl}")
    o("s_load_dwordx2 s[20:21], s[0:1], 96"); o("s_mov_b32 s22, 65536"); o("s_mov_b32 s23, 0x00020000"); o("s_waitcnt lgkmcnt(0)")
    o("s_lshl_b32 s24, s2, 7")
    o("s_mov_b64 exec, 0xffff"); o("v_and_b32 v1, 63, v0"); o("v_lshlrev_b32 v1, 2, v1"); o(f"buffer_store_dword v{v}, v1, s[20:23], s24 offen offset:{base*4}")
def head(name):
    o(".text"); o(f".globl {name}"); o(".p2align 8"); o(f".type {name},@function"); o(f"{name}:")

K1_CNT=0; K1_START=1024; K1_REC=2048; K1_LDS=K1_REC+CH*8
def k1():
    head("part_kernel")
    O=4; I=16; A=28; B=34; R=44; W=54; t0,t1,t2,t3=74,75,76,77
    ld=OPT["ld1"]
    o(f"s_cmp_ge_u32 s2, {NP}"); o("s_cbranch_scc1 K1_BLOB")
    o("v_mov_b32 v96, 0"); stamp(0,96)
    o("s_load_dwordx4 s[24:27], s[0:1], 8")
    o("s_load_dwordx2 s[28:29], s[0:1], 32")
    o("s_load_dwordx2 s[32:33], s[0:1], 104")
    o("s_load_dwordx2 s[8:9], s[0:1], 0")
    def pfk():
        n=OPT["pfn"]*32; sl=(n//31+63)//64*64
        if n==0:
            o("s_mov_b32 s11, 0x00020000"); o("v_lshlrev_b32 v97, 6, v0"); sl=E*32//NP
            o(f"s_mul_i32 s12, s2, {sl}"); o(f"s_add_u32 s10, s12, {sl}"); o(f"buffer_load_dword v97, v97, s[8:11], s12 offen {OPT['pff']}")
            return 1
        o("s_lshr_b32 s12, s2, 3"); o(f"s_mul_i32 s12, s12, {sl}"); o(f"s_add_u32 s10, s12, {sl}"); o(f"s_min_u32 s10, s10, {E*32}")
        o("s_mov_b32 s11, 0x00020000"); o("v_lshlrev_b32 v97, 6, v0"); o("s_add_u32 s13, s12, 65536")
        o(f"buffer_load_dword v98, v97, s[8:11], s12 offen {OPT['pff']}"); o(f"buffer_load_dword v99, v97, s[8:11], s13 offen {OPT['pff']}")
        if not OPT["pfm"]: return 2
        sl=((E*32-n)//NP+63)//64*64
        o(f"s_mul_i32 s12, s2, {sl}"); o(f"s_add_u32 s12, s12, {n}"); o(f"s_add_u32 s10, s12, {sl}"); o(f"s_min_u32 s10, s10, {E*32}")
        o(f"buffer_load_dword v97, v97, s[8:11], s12 offen nt")
        return 3
    nk=0
    o("v_lshlrev_b32 v1, 4, v0"); o("v_lshlrev_b32 v2, 3, v0"); o("v_lshlrev_b32 v3, 2, v0")
    o(f"s_mul_i32 s34, s2, {CH*4}"); o("s_add_u32 s35, s34, 16384"); o("s_add_u32 s36, s34, 32768")
    o(f"s_mul_i32 s37, s2, {CH*2}"); o("s_add_u32 s38, s37, 8192"); o("s_add_u32 s39, s37, 16384")
    o(f"v_and_b32 v{t0}, 0x3fc, v3"); o(f"v_mov_b32 v{t1}, 0"); o(f"v_mov_b32 v78, 8")
    o(f"ds_write_b32 v{t0}, v{t1} offset:{K1_CNT}")
    o(f"s_mov_b32 s6, {T*4}"); o("s_mov_b32 s7, 0x00020000"); o(f"s_mov_b32 s30, {T*2}"); o("s_mov_b32 s31, 0x00020000")
    o("s_waitcnt lgkmcnt(0)"); o("s_barrier")
    o("s_mov_b32 s4, s26"); o("s_mov_b32 s5, s27")
    o(f"buffer_load_dwordx4 v[{O}:{O+3}], v1, s[4:7], s34 offen {ld}")
    o(f"buffer_load_dwordx4 v[{O+4}:{O+7}], v1, s[4:7], s35 offen {ld}")
    o(f"buffer_load_dwordx2 v[{O+8}:{O+9}], v2, s[4:7], s36 offen {ld}")
    o(f"buffer_load_dwordx2 v[{A}:{A+1}], v2, s[28:31], s37 offen {ld}")
    o(f"buffer_load_dwordx2 v[{A+2}:{A+3}], v2, s[28:31], s38 offen {ld}")
    o(f"buffer_load_dword v{A+4}, v3, s[28:31], s39 offen {ld}")
    o(f"s_mov_b32 s26, {T*4}"); o("s_mov_b32 s27, 0x00020000")
    o(f"buffer_load_dwordx4 v[{I}:{I+3}], v1, s[24:27], s34 offen {ld}")
    o(f"buffer_load_dwordx4 v[{I+4}:{I+7}], v1, s[24:27], s35 offen {ld}")
    o(f"buffer_load_dwordx2 v[{I+8}:{I+9}], v2, s[24:27], s36 offen {ld}")
    if OPT["pfk"]==1: nk=pfk()
    srd(16,32,NP*CH*8); srd(20,32,NB*TABROW,WS_TAB)
    o("s_mov_b32 s41, 52429"); o(f"s_mov_b32 s42, {-EB}"); o("s_mov_b32 s43, 0xfc000000")
    o(f"s_mov_b32 s47, {(131072-SPLIT)<<8}"); o(f"s_mov_b32 s48, {1<<25}")
    o("v_and_b32 v79, 63, v0"); o("v_lshlrev_b32 v88, 4, v79")
    stamp(1,96)
    for i in range(10):
        if i in (0,4,8): o(f"s_waitcnt vmcnt({nk+8-i//4})")
        o(f"v_lshrrev_b32 v{t0}, 7, v{O+i}")
        o(f"v_mul_u32_u24 v{t0}, s41, v{t0}")
        o(f"v_lshrrev_b32 v{t0}, 18, v{t0}")
        o(f"v_lshlrev_b32 v{B+i}, 2, v{t0}")
        o(f"ds_add_rtn_u32 v{R+i}, v{B+i}, v78 offset:{K1_CNT}")
        o(f"v_mad_i32_i24 v{t0}, v{t0}, s42, v{O+i}")
        o(f"v_lshlrev_b32 v{t0}, 22, v{t0}")
        o(f"v_and_or_b32 v{t1}, v{O+i}, 15, 16")
        o(f"v_and_or_b32 v{W+2*i}, v{t0}, s43, v{t1}")
    stamp(2,96)
    for i in range(10):
        a=A+i//2
        if i in (0,4,8): o(f"s_waitcnt vmcnt({nk+5-i//4})")
        if i&1: o(f"v_and_b32 v{t0}, 0xffff0000, v{a}")
        else: o(f"v_lshlrev_b32 v{t0}, 16, v{a}")
        o(f"v_mul_f32 v{t0}, 0.15915494, v{t0}"); o(f"v_add_f32 v{t1}, v{t0}, v{t0}")
        o(f"v_fract_f32 v{t0}, v{t0}"); o(f"v_fract_f32 v{t1}, v{t1}")
        o(f"v_cos_f32 v{t0}, v{t0}"); o(f"v_cos_f32 v{t1}, v{t1}")
        o("s_nop 0")
        o(f"v_cvt_pk_bf16_f32 v{W+2*i+1}, v{t0}, v{t1}")
    def addin(i):
        o(f"v_lshl_add_u32 v{t0}, v{I+i}, 8, s47")
        o(f"v_lshl_or_b32 v{W+2*i}, v{I+i}, 5, v{W+2*i}")
        o(f"v_and_or_b32 v{W+2*i}, v{t0}, s48, v{W+2*i}")
    stamp(3,96)
    o("s_waitcnt lgkmcnt(0)"); o("s_barrier")
    stamp(4,96)
    S=80
    o(f"ds_read_b128 v[{S}:{S+3}], v88 offset:{K1_CNT}")
    o(f"s_waitcnt vmcnt({nk+2})")
    for i in range(4): addin(i)
    o("s_waitcnt lgkmcnt(0)")
    o(f"v_add_u32 v{S+5}, v{S}, v{S+1}"); o(f"v_add3_u32 v{S+4}, v{S+5}, v{S+2}, v{S+3}")
    o(f"v_mov_b32 v{S+9}, v{S+4}")
    for sh in ("row_shr:1","row_shr:2","row_shr:4","row_shr:8"):
        o("s_nop 1"); o(f"v_add_u32_dpp v{S+9}, v{S+9}, v{S+9} {sh} row_mask:0xf bank_mask:0xf bound_ctrl:0")
    o("s_nop 1"); o(f"v_add_u32_dpp v{S+9}, v{S+9}, v{S+9} row_bcast:15 row_mask:0xa bank_mask:0xf")
    o("s_nop 1"); o(f"v_add_u32_dpp v{S+9}, v{S+9}, v{S+9} row_bcast:31 row_mask:0xc bank_mask:0xf")
    o(f"v_sub_u32 v92, v{S+9}, v{S+4}")
    o(f"v_add_u32 v93, v92, v{S}"); o(f"v_add_u32 v94, v92, v{S+5}"); o(f"v_add_u32 v95, v94, v{S+2}")
    o(f"ds_write_b128 v88, v[92:95] offset:{K1_START}")
    for i in range(10): o(f"ds_read_b32 v{B+i}, v{B+i} offset:{K1_START}")
    o(f"s_waitcnt vmcnt({nk})")
    if OPT["pfk"]==2: pfk()
    for i in range(4,10): addin(i)
    stamp(5,96)
    for i in range(10):
        o(f"s_waitcnt lgkmcnt({min(9,15)})") if i==0 else o(f"s_waitcnt lgkmcnt(9)")
        o(f"v_add_u32 v{B+i}, v{B+i}, v{R+i}")
        o(f"ds_write_b64 v{B+i}, v[{W+2*i}:{W+2*i+1}] offset:{K1_REC}")
    o("v_readfirstlane_b32 s46, v0"); o("s_cmp_lt_u32 s46, 960"); o("s_cbranch_scc1 K1_NOTAB")
    o(f"s_mul_i32 s47, s2, {(2**16+SPW-1)//SPW}"); o("s_lshr_b32 s47, s47, 16")
    o(f"s_mul_i32 s48, s47, {256-SPW*8}"); o("s_lshl_b32 s47, s2, 3"); o("s_add_u32 s47, s47, s48")
    o(f"s_mov_b32 s48, {4*TABROW}"); o("v_mul_u32_u24 v90, s48, v79"); o(f"s_mul_i32 s34, s2, {CH*8}")
    o(f"v_add_u32 v4, s34, v92"); o(f"v_add_u32 v5, s34, v93"); o("v_mov_b32 v6, v5"); o(f"v_add_u32 v7, s34, v94")
    o("v_mov_b32 v8, v7"); o(f"v_add_u32 v9, s34, v95"); o("v_mov_b32 v10, v9"); o(f"v_add_u32 v11, s34, v{S+9}")
    for q in range(4):
        o(f"buffer_store_dwordx2 v[{4+2*q}:{5+2*q}], v90, s[20:23], s47 offen {OPT['st1']}")
        o(f"s_add_u32 s47, s47, {TABROW}")
    o("K1_NOTAB:")
    o("s_waitcnt lgkmcnt(0)"); o("s_barrier")
    stamp(6,96)
    o(f"v_add_u32 v2, 49152, v1")
    for q in range(5):
        if q<3: o(f"ds_read_b128 v[{12+4*q}:{15+4*q}], v1 offset:{K1_REC+q*16384}")
        else: o(f"ds_read_b128 v[{12+4*q}:{15+4*q}], v2 offset:{K1_REC+(q-3)*16384}")
    o(f"s_mul_i32 s34, s2, {CH*8}")
    for q in range(5):
        o(f"s_waitcnt lgkmcnt({4-q})")
        o(f"buffer_store_dwordx4 v[{12+4*q}:{15+4*q}], v1, s[16:19], s34 offen {OPT['st1']}")
        o("s_add_u32 s34, s34, 16384")
    if OPT["pfk"]==3: pfk()
    if OPT["pfk"]: o("s_waitcnt vmcnt(0)")
    stamp(7,96); stampout(96,0,"K1_END")
    o("K1_END:"); o("s_endpgm")
    o("K1_BLOB:")
    o(f"s_cmp_gt_u32 s2, {NP}"); o("s_cbranch_scc1 K1_END")
    o("v_readfirstlane_b32 s3, v0"); o("s_cmp_ge_u32 s3, 64"); o("s_cbranch_scc1 K1_END")
    o("s_load_dwordx2 s[8:9], s[0:1], 40"); o("s_load_dwordx8 s[24:31], s[0:1], 56"); o("s_load_dwordx2 s[32:33], s[0:1], 104")
    o("v_and_b32 v2, 15, v0"); o("v_bfe_u32 v12, v0, 4, 2"); o("v_lshlrev_b32 v11, 1, v2")
    o("v_lshl_or_b32 v13, v12, 7, v11"); o("v_lshl_or_b32 v14, v12, 8, v11"); o("v_lshlrev_b32 v15, 3, v12"); o("v_and_b32 v15, 8, v15")
    o("s_mov_b32 s10, 16"); o("s_mov_b32 s11, 0x00020000")
    o("s_waitcnt lgkmcnt(0)")
    o("buffer_load_dwordx2 v[70:71], v15, s[8:11], 0 offen")
    def wload(dst,sb,size,va,off,st,n=4):
        srd(20,sb,size)
        for j in range(n): o(f"buffer_load_ushort v{40+2*dst+j}, v{va}, s[20:23], 0 offen offset:{off+j*st}")
    o("v_lshl_or_b32 v3, v15, 5, v11")
    wload(10,24,256,13,0,32); wload(6,26,512,14,0,64); wload(8,26,512,14,32,64); wload(0,28,512,3,0,32,8); wload(4,30,512,13,0,32)
    srd(20,32,5120,WS_BLOB)
    o("v_lshlrev_b32 v1, 4, v0"); o("v_cmp_gt_u32 vcc, 32, v0")
    o("s_waitcnt vmcnt(0)")
    for i in range(12): o(f"v_lshl_or_b32 v{20+i}, v{41+2*i}, 16, v{40+2*i}")
    for i in range(4): o(f"v_cndmask_b32 v{16+i}, 0, v{20+i}, vcc"); o(f"v_xor_b32 v{20+i}, v{20+i}, v{16+i}")
    for j in range(4): o(f"v_and_b32 v{32+j}, 0xffff0000, v{70+j//2}" if j&1 else f"v_lshlrev_b32 v{32+j}, 16, v{70+j//2}")
    for q in range(4): o(f"buffer_store_dwordx4 v[{16+4*q}:{19+4*q}], v1, s[20:23], 0 offen offset:{q*1024}")
    o("s_movk_i32 s3, 4096"); o("buffer_store_dwordx4 v[32:35], v1, s[20:23], s3 offen")
    o("s_endpgm")
    desc("part_kernel",100,56)

K2_CNT=0; K2_TILE=512; TS=2176; T1=1088; K2_LISTS=K2_TILE+NW*TS; K2_LDS=K2_LISTS+80*LB
def k2():
    head("acc_kernel")
    vL8=1; vTW=2; vH16=3; vIA=4; vTR=5; vSel=6; vZero=7; vEO=8; vEight=9; vLane=10
    RD=OPT["rd"]
    ACC=16; WLO=48; WHI=52; WU=56; WG0=58; WG1=60; WH=62; CEN=64; VM=68; RB=76
    G=84; PK=G+4*RD; WACC=134; DD=142; VB=150; RR=158; VY=12; VT=161; PR=84; PT=136; IT=158; BUF=84
    assert PK+RD<=WACC and K2_LISTS%256==0
    TAB=24; MSK=76
    LIM=NP*CH*8
    o(f"s_cmp_ge_u32 s2, {NB}"); o("s_cbranch_scc1 K2_END")
    o("s_load_dwordx2 s[4:5], s[0:1], 104")
    o("s_load_dwordx2 s[12:13], s[0:1], 0")
    o("v_mov_b32 v160, 0"); stamp(0,160)
    o("v_lshrrev_b32 v11, 6, v0"); o(f"v_and_b32 v{vLane}, 63, v0")
    o("s_and_b32 s20, s2, 7"); o("s_lshr_b32 s9, s2, 3"); o("s_mul_i32 s22, s20, 31"); o("s_min_u32 s20, s20, 2")
    o("v_readfirstlane_b32 s3, v11")
    o("s_add_u32 s2, s22, s20"); o("s_add_u32 s2, s2, s9")
    o(f"s_mul_i32 s20, s2, {TABROW}"); o("s_lshl_b32 s21, s3, 8"); o("s_add_u32 s20, s20, s21"); o(f"s_add_u32 s20, s20, {WS_TAB}")
    o(f"v_lshlrev_b32 v{vL8}, 3, v{vLane}")
    o(f"s_mov_b32 s6, {WS_BLOB}"); o("s_mov_b32 s7, 0x00020000")
    o("s_waitcnt lgkmcnt(0)")
    o("s_add_u32 s22, s4, s20"); o("s_addc_u32 s23, s5, 0")
    for k in range(3): o(f"s_load_dwordx16 s[{TAB+16*k}:{TAB+16*k+15}], s[22:23], {64*k}")
    o(f"s_load_dwordx2 s[{TAB+48}:{TAB+49}], s[22:23], 192")
    o(f"s_mov_b64 exec, {(1<<SPW)-1}")
    o(f"buffer_load_dwordx2 v[{PT}:{PT+1}], v{vL8}, s[4:7], s20 offen")
    o("s_mov_b64 exec, -1")
    def lbase(d,src,add):
        o(f"v_and_b32 v12, 0x78, v{src}"); o(f"v_bfe_u32 v13, v{src}, 1, 2"); o(f"v_and_b32 v{d}, 1, v{src}")
        o(f"v_lshl_or_b32 v12, v{d}, 2, v12"); o("v_or_b32 v12, v12, v13"); o(f"v_mul_u32_u24 v12, {LB}, v12"); o(f"v_add_u32 v{d}, {K2_LISTS+add}, v12")
    def initcnt():
        lbase(11,0,0); o("v_and_b32 v13, 127, v0"); o("v_lshlrev_b32 v13, 2, v13")
        o(f"ds_write_b32 v13, v11 offset:{K2_CNT}")
    initcnt()
    o(f"s_mov_b32 s14, {E*32}"); o("s_mov_b32 s15, 0x00020000")
    for i in range(32): o(f"v_mov_b32 v{ACC+i}, 0")
    o(f"v_and_b32 v{vH16}, 16, v0"); o(f"v_mov_b32 v{vEight}, 8"); o(f"v_mov_b32 v{vZero}, 0")
    o(f"s_mul_i32 s20, s3, {8*LB}"); o(f"s_add_u32 s20, s20, {K2_LISTS}")
    o(f"s_mul_i32 s21, s3, {TS}"); o(f"s_add_u32 s21, s21, {K2_TILE}")
    o("v_and_b32 v14, 15, v0"); o("v_bfe_u32 v12, v0, 5, 1"); o("v_lshlrev_b32 v11, 3, v14"); o("v_lshl_or_b32 v11, v12, 7, v11")
    o(f"v_add_u32 v{vIA}, s20, v11")
    o(f"v_lshl_add_u32 v{vTR}, v{vLane}, 4, s21")
    o(f"ds_write_b128 v{vTR}, v[{ACC}:{ACC+3}]"); o(f"ds_write_b128 v{vTR}, v[{ACC}:{ACC+3}] offset:{T1}")
    o("v_bfe_u32 v11, v0, 2, 2"); o("v_lshlrev_b32 v11, 8, v11"); o("v_lshl_or_b32 v11, v12, 3, v11")
    o("v_and_b32 v13, 3, v0"); o("v_lshl_or_b32 v11, v13, 1, v11"); o(f"v_mul_u32_u24 v13, {T1//16}, v{vH16}")
    o(f"v_add3_u32 v{vTW}, v11, v13, s21")
    o(f"v_mul_u32_u24 v13, 0x202000, v{vH16}"); o(f"v_add_u32 v{vSel}, 0x05040100, v13")
    o(f"v_bfe_u32 v12, v0, 4, 2")
    o(f"s_mul_i32 s20, s2, {EB}"); o("s_lshl_b32 s21, s3, 6"); o("s_add_u32 s20, s20, s21")
    o(f"v_add_u32 v11, s20, v14")
    o(f"v_lshlrev_b32 v13, 3, v12"); o(f"v_lshl_or_b32 v{vEO}, v11, 5, v13")
    o(f"s_mul_i32 s9, s9, {NW}"); o("s_add_u32 s9, s9, s3"); o("s_lshl_b32 s74, s9, 13")
    o("s_movk_i32 s101, 1024"); o("s_mov_b32 s87, 0")
    o("s_waitcnt lgkmcnt(0)"); o("s_barrier")
    stamp(1,160)
    for j in range(SPW):
        o(f"s_min_u32 s6, s{TAB+2*j+1}, {LIM}")
        o(f"buffer_load_dwordx2 v[{PR+2*j}:{PR+2*j+1}], v{vL8}, s[4:7], s{TAB+2*j} offen {OPT['ld2']}")
        if j in (0,24): stamp(2+j//24,160)
    X=PR+2*SPW
    def place(r,t):
        o(f"v_cmpx_ne_u32 vcc, 0, v{r}")
        o(f"v_lshrrev_b32 v{t}, 23, v{r}")
        o(f"ds_add_rtn_u32 v{t}, v{t}, v{vEight} offset:{K2_CNT}"); o("s_waitcnt lgkmcnt(0)")
        o(f"v_min_u32 v{t}, {K2_LDS-8}, v{t}"); o(f"ds_write_b64 v{t}, v[{r}:{r+1}]")
        o("s_mov_b64 exec, -1")
    def xnext(lbl):
        o("s_ff1_i32_b32 s22, s100"); o("s_lshl_b32 m0, s22, 1"); o("s_nop 0"); o(f"s_movrels_b64 s[20:21], s[{TAB}:{TAB+1}]")
        o("s_add_u32 s20, s20, s8"); o(f"s_min_u32 s6, s21, {LIM}"); o("s_add_u32 s8, s8, 512"); o("s_add_u32 s23, s20, 512")
        o("s_cmp_lt_u32 s23, s6"); o(f"s_cbranch_scc1 {lbl}")
        o("s_bitset0_b32 s100, s22"); o("s_movk_i32 s8, 512"); o(f"{lbl}:")
    o(f"s_waitcnt vmcnt({SPW})")
    o(f"v_sub_u32 v{PT}, v{PT+1}, v{PT}"); o(f"v_cmp_lt_u32 vcc, 512, v{PT}")
    o("s_movk_i32 s8, 512"); o("s_mov_b32 s6, 0"); o("s_mov_b32 s20, 0")
    o(f"s_and_b32 s100, vcc_lo, {(1<<SPW)-1}"); o("s_mov_b32 s75, s100"); o("s_cbranch_scc0 K2_X0")
    xnext("K2_X0")
    o(f"buffer_load_dwordx2 v[{X}:{X+1}], v{vL8}, s[4:7], s20 offen")
    npf=0
    def prefetch(h,r):
        o(f"v_lshlrev_b32 v{r}, 6, v{vLane}")
        if h: o(f"s_add_u32 s74, s74, {SPLIT*32}")
        o(f"buffer_load_dword v{r+1}, v{r}, s[12:15], s74 offen"); o(f"s_add_u32 s23, s74, 4096")
        o(f"buffer_load_dword v{r}, v{r}, s[12:15], s23 offen")
    def extra():
        o("s_load_dwordx2 s[16:17], s[0:1], 88"); o("s_load_dwordx2 s[88:89], s[0:1], 24")
        o(f"s_mov_b32 s6, {WS_BLOB+5120}"); o(f"s_mov_b32 s18, {WS_BLOB}"); o(f"s_mov_b32 s19, {WS_BLOB+4096}"); o(f"v_lshlrev_b32 v11, 4, v{vLane}")
        for k in range(4): o(f"buffer_load_dwordx4 v[{WLO+4*k}:{WLO+4*k+3}], v11, s[4:7], s18 offen offset:{1024*k}")
        o(f"buffer_load_dwordx4 v[{CEN}:{CEN+3}], v11, s[4:7], s19 offen")
        for g in range(4): o(f"buffer_load_dwordx2 v[{VM+2*g}:{VM+2*g+1}], v{vEO}, s[12:15], 0 offen offset:{g*512}")
        o(f"v_lshrrev_b32 v11, 5, v{vEO}"); o("v_lshlrev_b32 v11, 1, v11")
        o(f"s_mov_b32 s90, {E*2}"); o("s_mov_b32 s91, 0x00020000"); o(f"s_mov_b32 s18, {E*32}"); o("s_mov_b32 s19, 0x00020000")
        o("s_waitcnt lgkmcnt(0)")
        for g in range(4): o(f"buffer_load_ushort v{RB+2*g}, v11, s[88:91], 0 offen offset:{g*32}")
        return 13
    if OPT["xpos"]==0: npf+=extra()
    if OPT["pf0"]==1: prefetch(0,IT); npf+=2
    stamp(6,160)
    for k in range(5):
        o(f"s_waitcnt vmcnt({npf+SPW+1-5*(k+1)})")
        if k in (0,4): stamp(7+k//4,160)
        P=PT+5*(k&1)
        for q in range(5):
            j=5*k+q; o(f"v_cmp_ne_u32 s[{MSK+2*q}:{MSK+2*q+1}], 0, v{PR+2*j}")
            o(f"v_lshrrev_b32 v{P+q}, 23, v{PR+2*j}")
        for q in range(5):
            o(f"s_mov_b64 exec, s[{MSK+2*q}:{MSK+2*q+1}]")
            o(f"ds_add_rtn_u32 v{P+q}, v{P+q}, v{vEight} offset:{K2_CNT}")
        for q in range(5):
            j=5*k+q; o(f"s_mov_b64 exec, s[{MSK+2*q}:{MSK+2*q+1}]"); o("s_waitcnt lgkmcnt(4)")
            o(f"v_min_u32 v{P+q}, {K2_LDS-8}, v{P+q}")
            o(f"ds_write_b64 v{P+q}, v[{PR+2*j}:{PR+2*j+1}]")
        o("s_mov_b64 exec, -1")
    o("s_cmp_eq_u32 s75, 0"); o("s_cbranch_scc1 K2_XD")
    o("K2_XL:")
    o("s_waitcnt vmcnt(0)")
    place(X,PT+10)
    o("s_cmp_eq_u32 s100, 0"); o("s_cbranch_scc1 K2_XD")
    xnext("K2_X1")
    o("s_waitcnt lgkmcnt(0)")
    o(f"buffer_load_dwordx2 v[{X}:{X+1}], v{vL8}, s[4:7], s20 offen")
    o("s_branch K2_XL")
    o("K2_XD:")
    if OPT["xpos"]==1: extra()
    if OPT["pf0"]==2: prefetch(0,148)
    stamp(9,160)
    o("K2_COMMON:")
    o("s_waitcnt lgkmcnt(0)" if OPT["xpos"]==1 and OPT["pf0"]!=1 else "s_waitcnt vmcnt(0) lgkmcnt(0)"); o("s_barrier")
    stamp(10,160)
    o(f"v_lshlrev_b32 v11, 2, v{vLane}")
    o(f"ds_read_b32 v{PT+4}, v11 offset:{K2_CNT}"); o(f"ds_read_b32 v{PT+5}, v11 offset:{K2_CNT+256}")
    o("s_lshl_b32 s20, s3, 5"); o(f"v_lshrrev_b32 v14, 5, v{vLane}"); o("v_lshl_add_u32 v14, v14, 2, s20")
    for i in range(4): o(f"ds_read_b32 v{PT+i}, v14 offset:{K2_CNT+8*i}")
    lbase(14,vLane,LB)
    o(f"v_add_u32 v15, {64*LB}, v14")
    o(f"v_and_b32 v11, 0xf8, v{vL8}"); o(f"v_mov_b32 v{PT+8}, -1"); o(f"v_mov_b32 v{PT+9}, 0")
    o("s_waitcnt lgkmcnt(0)")
    o(f"v_cmp_gt_u32 vcc, v{PT+4}, v14"); o(f"v_cmp_gt_u32 s[20:21], v{PT+5}, v15")
    o("s_or_b64 vcc, vcc, s[20:21]"); o("s_cbranch_vccnz K2_SLOWINIT")
    NS=50
    o(f"s_mul_i32 s22, s3, {8*CAPS}"); o(f"s_add_u32 s22, s22, {K2_LISTS//256}")
    for i in range(4):
        o(f"v_add_u32 v12, 255, v{PT+i}"); o(f"v_add_u32 v13, v11, v{PT+i}"); o("v_and_b32 v14, 0xffffff00, v12")
        o("v_lshrrev_b32 v12, 8, v12")
        o("v_cmp_lt_u32 vcc, v13, v14")
        o(f"v_readlane_b32 s{NS+2*i}, v12, 0"); o(f"v_readlane_b32 s{NS+2*i+1}, v12, 32")
        o("s_mov_b64 exec, vcc")
        o(f"ds_write_b64 v13, v[{PT+8}:{PT+9}]")
        o("s_mov_b64 exec, -1")
        for h in range(2):
            n=NS+2*i+h
            o(f"s_sub_u32 s{n}, s{n}, s22"); o(f"s_sub_u32 s{n}, s{n}, {(h*4+i)*CAPS}")
            if i+h==0: o(f"s_bfm_b64 s[24:25], s{n}, 0")
            else: o(f"s_bfm_b64 s[26:27], s{n}, {(h*4+i)*CAPS}"); o("s_or_b64 s[24:25], s[24:25], s[26:27]")
    C5=sum(1<<(6*k+5) for k in range(8))
    o("s_cbranch_scc0 K2_MDONE")
    o("s_lshr_b64 s[28:29], s[24:25], 1"); o("s_mov_b64 s[26:27], s[24:25]")
    o(f"s_andn2_b32 s28, s28, {C5&0xffffffff}"); o(f"s_andn2_b32 s29, s29, {C5>>32}"); o("s_andn2_b64 s[28:29], s[24:25], s[28:29]")
    o("s_mov_b32 s30, 0x7fffe0")
    if OPT["prio"]: o("s_setprio 3")
    def nextpos(sp,dst):
        o(f"s_ff1_i32_b64 s{sp}, s[24:25]"); o(f"s_bitset0_b64 s[24:25], s{sp}")
        o(f"v_lshl_add_u32 v11, s{sp}, 8, v{vIA}"); o(f"ds_read_b64 v[{dst}:{dst+1}], v11")
    def gather(sp,r,k):
        o(f"v_and_or_b32 v11, v{r}, s30, v{vH16}"); o(f"v_lshlrev_b32 v{r}, 4, v{r}")
        o(f"s_cmp_ge_i32 s{sp}, 0"); o(f"v_perm_b32 v{PK+k}, v{r+1}, v{r}, v{vSel}")
        o("s_cselect_b64 exec, -1, 1" if OPT["abl"]!=2 else "s_cselect_b64 exec, 1, 1")
        o(f"buffer_load_dwordx4 v[{G+4*k}:{G+4*k+3}], v11, s[12:15], 0 offen")
        o("s_mov_b64 exec, -1")
    for k in range(RD): nextpos(32+k,G+4*k)
    for k in range(8): o(f"v_mov_b32 v{WACC+k}, 0")
    for k in range(RD):
        o(f"s_waitcnt lgkmcnt({RD-1-k})"); gather(32+k,G+4*k,k)
    stamp(11,160)
    o("K2_LOOP:")
    for k in range(RD):
        g=G+4*k
        if OPT["abl"]!=1:
            o(f"v_add_u32_sdwa v{VT}, v{PK+k}, v{vTW} dst_sel:DWORD dst_unused:UNUSED_PAD src0_sel:BYTE_0 src1_sel:DWORD")
            o(f"ds_write_b16_d16_hi v{VT}, v{PK+k}")
        nextpos(32,RR)
        if OPT["abl"]!=1:
            o(f"ds_read_b128 v[{VB}:{VB+3}], v{vTR}"); o(f"ds_read_b128 v[{VB+4}:{VB+7}], v{vTR} offset:{T1}")
            o(f"ds_write_b16 v{VT}, v{vZero}")
        o("s_ff1_i32_b64 s33, s[26:27]"); o("s_bitset0_b64 s[26:27], s33")
        o(f"s_waitcnt vmcnt({RD-1})")
        if OPT["abl"]!=1:
            o(f"v_mfma_f32_16x16x32_bf16 v[{DD}:{DD+3}], v[{g}:{g+3}], v[{WLO}:{WLO+3}], 0")
            o(f"v_mfma_f32_16x16x32_bf16 v[{DD+4}:{DD+7}], v[{g}:{g+3}], v[{WHI}:{WHI+3}], 0")
        o("s_waitcnt lgkmcnt(3)" if OPT["abl"]!=1 else "s_waitcnt lgkmcnt(0)")
        gather(32,RR,k)
        if OPT["abl"]!=1:
            for j in range(4): o(f"v_cvt_pk_bf16_f32 v{VY+j}, v{DD+2*j}, v{DD+2*j+1}")
            o("s_bitcmp1_b64 s[28:29], s33"); o("s_waitcnt lgkmcnt(1)")
            o(f"v_mfma_f32_16x16x32_bf16 v[{WACC}:{WACC+3}], v[{VY}:{VY+3}], v[{VB}:{VB+3}], v[{WACC}:{WACC+3}]")
            o(f"v_mfma_f32_16x16x32_bf16 v[{WACC+4}:{WACC+7}], v[{VY}:{VY+3}], v[{VB+4}:{VB+7}], v[{WACC+4}:{WACC+7}]")
        else: o("s_bitcmp1_b64 s[28:29], s33")
        if k<RD-1:
            o(f"s_cbranch_scc0 K2_N{k}"); o("s_call_b64 s[34:35], K2_FLUSH"); o("s_cbranch_scc1 K2_MDONE"); o(f"K2_N{k}:")
        else:
            o("s_cbranch_scc0 K2_LOOP"); o("s_call_b64 s[34:35], K2_FLUSH"); o("s_cbranch_scc0 K2_LOOP"); o("s_branch K2_MDONE")
    t=100
    assert PK+RD<=t
    def rnd(a,b,p):
        o(f"v_cvt_pk_bf16_f32 v{p}, v{a}, v{b}"); o(f"v_lshlrev_b32 v{a}, 16, v{p}"); o(f"v_and_b32 v{b}, 0xffff0000, v{p}")
    def epi(g):
        a=ACC+8*g; rb=RB+2*g
        o(f"v_lshlrev_b32 v{rb}, 16, v{rb}")
        for j in range(4): o(f"v_sub_f32 v{t+j}, v{rb}, v{CEN+j}")
        rnd(t,t+1,t+4); rnd(t+2,t+3,t+4)
        for j in range(4): o(f"v_mul_f32 v{t+j}, v{t+j}, v{t+j}")
        rnd(t,t+1,t+4); rnd(t+2,t+3,t+4)
        for j in range(4): o(f"v_mul_f32 v{t+j}, 0xc1200000, v{t+j}")
        rnd(t,t+1,t+4); rnd(t+2,t+3,t+4)
        for j in range(4): o(f"v_mul_f32 v{t+j}, 0x3fb8aa3b, v{t+j}")
        for j in range(4): o(f"v_exp_f32 v{t+j}, v{t+j}")
        o("s_nop 0")
        o(f"v_cvt_pk_bf16_f32 v{rb}, v{t}, v{t+1}"); o(f"v_cvt_pk_bf16_f32 v{rb+1}, v{t+2}, v{t+3}")
        o("s_nop 1")
        o(f"v_mfma_f32_16x16x16_bf16 v[{t+16}:{t+19}], v[{WG0}:{WG0+1}], v[{rb}:{rb+1}], 0")
        o(f"v_mfma_f32_16x16x16_bf16 v[{t+20}:{t+23}], v[{WG1}:{WG1+1}], v[{rb}:{rb+1}], 0")
        o(f"v_mfma_f32_16x16x16_bf16 v[{t+24}:{t+27}], v[{WH}:{WH+1}], v[{rb}:{rb+1}], 0")
        o("s_nop 7")
        for j in range(4): o(f"v_mul_f32 v{t+8+j}, v{a+j}, v{t+16+j}")
        for j in range(4): o(f"v_fmac_f32 v{t+8+j}, v{a+4+j}, v{t+20+j}")
        o(f"v_cvt_pk_bf16_f32 v{t+4}, v{t+8}, v{t+9}"); o(f"v_cvt_pk_bf16_f32 v{t+5}, v{t+10}, v{t+11}")
        o("s_nop 1")
        o(f"v_mfma_f32_16x16x16_bf16 v[{t+12}:{t+15}], v[{WU}:{WU+1}], v[{t+4}:{t+5}], 0")
        for j in range(4):
            o(f"v_and_b32 v{t+j}, 0xffff0000, v{VM+2*g+j//2}" if j&1 else f"v_lshlrev_b32 v{t+j}, 16, v{VM+2*g+j//2}")
        o("s_nop 4")
        for j in range(4): o(f"v_fmac_f32 v{t+j}, v{t+12+j}, v{t+24+j}")
        o(f"v_cvt_pk_bf16_f32 v{VM+2*g}, v{t}, v{t+1}"); o(f"v_cvt_pk_bf16_f32 v{VM+2*g+1}, v{t+2}, v{t+3}")
        o(f"buffer_store_dwordx2 v[{VM+2*g}:{VM+2*g+1}], v{vEO}, s[16:19], 0 offen offset:{g*512}")
    o("K2_FLUSH:")
    o("s_mul_i32 s33, s33, 43"); o("s_bfe_u32 s36, s33, 0x20008"); o("s_nop 4")
    for g in range(4):
        if g<3: o(f"s_cmp_lg_u32 s36, {g}"); o(f"s_cbranch_scc1 K2_F{g+1}")
        for j in range(8): o(f"v_add_f32 v{ACC+8*g+j}, v{ACC+8*g+j}, v{WACC+j}")
        if g==3 and OPT["dbg"]>=0:
            o("s_bitcmp1_b32 s33, 10"); o(f"s_cbranch_scc1 K2_G3"); stamp(12,160); o("K2_G3:")
        o("s_cmp_lt_u32 s33, s101"); o("s_cbranch_scc1 K2_FZ")
        o(f"K2_E{g}:"); o(f"s_bitset1_b32 s87, {g}"); epi(g)
        if g<3: o("s_branch K2_FZ"); o(f"K2_F{g+1}:")
    o("K2_FZ:")
    for j in range(8): o(f"v_mov_b32 v{WACC+j}, 0")
    o("s_cmp_eq_u64 s[26:27], 0"); o("s_setpc_b64 s[34:35]")
    o("K2_MDONE:")
    stamp(13,160)
    o("s_cmp_lg_u32 s101, 1024"); o("s_cbranch_scc1 K2_SLOWNEXT")
    o("K2_EPI:")
    o("s_waitcnt vmcnt(0)")
    for g in range(4):
        o(f"s_bitcmp1_b32 s87, {g}"); o(f"s_cbranch_scc1 K2_D{g}"); o(f"s_call_b64 s[34:35], K2_E{g}"); o(f"K2_D{g}:")
    stamp(14,160); stampout(160,16,"K2_END")
    o("K2_END:"); o("s_endpgm")
    o("K2_SLOWINIT:")
    o("s_mov_b32 s101, -1"); o("s_mov_b32 s96, -1"); o("s_mov_b32 s98, 0"); o("s_mov_b32 s99, 0")
    o("K2_SLOWNEXT:")
    o("s_add_u32 s98, s98, 1536"); o("s_mov_b32 s74, 0")
    o("K2_SLOWADV:")
    o("s_cmp_lt_u32 s98, s99"); o("s_cbranch_scc1 K2_SLOWGO")
    o("s_add_u32 s96, s96, 1"); o(f"s_cmp_ge_u32 s96, {NP}"); o("s_cbranch_scc1 K2_SLOWEND")
    o(f"s_mul_i32 s20, s96, {(2**16+SPW-1)//SPW}"); o("s_lshr_b32 s20, s20, 16"); o(f"s_mul_i32 s20, s20, {256-SPW*8}")
    o("s_lshl_b32 s21, s96, 3"); o("s_add_u32 s20, s20, s21"); o(f"s_mul_i32 s21, s2, {TABROW}"); o("s_add_u32 s20, s20, s21")
    o(f"s_add_u32 s20, s20, {WS_TAB}")
    o("s_load_dwordx2 s[98:99], s[4:5], s20"); o("s_waitcnt lgkmcnt(0)")
    o(f"s_min_u32 s99, s99, {LIM}"); o("s_branch K2_SLOWADV")
    o("K2_SLOWEND:")
    o("s_branch K2_EPI")
    o("K2_SLOWGO:")
    o("s_waitcnt vmcnt(0) lgkmcnt(0)"); o("s_barrier")
    initcnt()
    o("s_waitcnt lgkmcnt(0)"); o("s_barrier")
    o("s_cmp_ge_u32 s3, 3"); o("s_cbranch_scc1 K2_COMMON")
    o("s_lshl_b32 s20, s3, 9"); o("s_add_u32 s20, s20, s98"); o("s_mov_b32 s6, s99")
    o(f"buffer_load_dwordx2 v[{X}:{X+1}], v{vL8}, s[4:7], s20 offen")
    o("s_waitcnt vmcnt(0)")
    place(X,PT+10)
    o("s_branch K2_COMMON")
    desc("acc_kernel",164)

o(f"; @launch kernel=part_kernel grid=({NP+1},1,1) block=(1024,1,1) lds={K1_LDS}")
o(f"; @launch kernel=acc_kernel grid=({NB},1,1) block=({NW*64},1,1) lds={K2_LDS}")
o('.amdgcn_target "amdgcn-amd-amdhsa--gfx950"')
k1(); k2()
open(sys.argv[1],"w").write("\n".join(out)+"\n")
```
